```python
import torch

def _softmax(x, axis=-1):
    return torch.softmax(x, dim=axis)
def _gelu(x):
    return torch.nn.functional.gelu(x, approximate="tanh")
def _silu(x):
    return torch.nn.functional.silu(x)
def _sigmoid(x):
    return torch.sigmoid(x)
def _layernorm(x, axis=-1, eps=1e-5):
    m = x.mean(dim=axis, keepdim=True)
    v = x.var(dim=axis, keepdim=True, unbiased=False)
    return (x - m) / torch.sqrt(v + eps)
def _scatter_add(tgt, idx, src, axis=0):
    return tgt.clone().index_add_(axis, idx, src)
def _segment_sum(src, seg, n):
    out = torch.zeros((n,) + src.shape[1:], dtype=src.dtype)
    return out.index_add_(0, seg, src)
def _pad(x, pw):
    flat = tuple(v for pair in reversed(pw) for v in pair)
    return torch.nn.functional.pad(x, flat)

kernel_name = 'concat_heads__gqa_block_cached__gqa_block_cached__near_ridge'

def setup_inputs():

    _w = (lambda a: (lambda t: t.to(torch.bfloat16) if t.is_floating_point() else t)(torch.as_tensor(a)))
    def _A_setup():
        B, Sq, D = 16, 64, 448
        Hq, Hkv, Sk, Dh = 16, 8, 1024, 256
        assert Hq % Hkv == 0, (Hq, Hkv)
        return {
            "x": _w((lambda *s: torch.randn(*s, dtype=torch.bfloat16) * 0.8)(B, Sq, D)),
            "k_cache": _w((lambda *s: torch.randn(*s, dtype=torch.bfloat16) * 0.8)(B, Hkv, Sk, Dh)),
            "v_cache": _w((lambda *s: torch.randn(*s, dtype=torch.bfloat16) * 0.05)(B, Hkv, Sk, Dh)),
            "wq": _w((lambda *s: torch.randn(*s, dtype=torch.bfloat16) * 0.8)(D, Hq * Dh) * (D ** -0.5)),
            "wo": _w((lambda *s: torch.randn(*s, dtype=torch.bfloat16) * 0.05)(Hq * Dh, D) * ((Hq * Dh) ** -0.5)),
        }
    _A_in = _A_setup()

    def _B_setup():
        B, Sq, D = 16, 64, 448
        Hq, Hkv, Sk, Dh = 16, 8, 1024, 256
        assert Hq % Hkv == 0, (Hq, Hkv)
        return {
            "x": _w((lambda *s: torch.randn(*s, dtype=torch.bfloat16) * 0.8)(B, Sq, D)),
            "k_cache": _w((lambda *s: torch.randn(*s, dtype=torch.bfloat16) * 0.8)(B, Hkv, Sk, Dh)),
            "v_cache": _w((lambda *s: torch.randn(*s, dtype=torch.bfloat16) * 0.05)(B, Hkv, Sk, Dh)),
            "wq": _w((lambda *s: torch.randn(*s, dtype=torch.bfloat16) * 0.8)(D, Hq * Dh) * (D ** -0.5)),
            "wo": _w((lambda *s: torch.randn(*s, dtype=torch.bfloat16) * 0.05)(Hq * Dh, D) * ((Hq * Dh) ** -0.5)),
        }
    _B_in = _B_setup()

    return {
        "A_x": _A_in["x"],
        "A_k_cache": _A_in["k_cache"],
        "A_v_cache": _A_in["v_cache"],
        "A_wq": _A_in["wq"],
        "A_wo": _A_in["wo"],
        "B_x": _B_in["x"],
        "B_k_cache": _B_in["k_cache"],
        "B_v_cache": _B_in["v_cache"],
        "B_wq": _B_in["wq"],
        "B_wo": _B_in["wo"],
    }

def reference(A_x, A_k_cache, A_v_cache, A_wq, A_wo, B_x, B_k_cache, B_v_cache, B_wq, B_wo):
    def _A_ref(x, k_cache, v_cache, wq, wo):
        B, Sq, D = x.shape
        Hq, Dh = 16, 256
        Hkv = k_cache.shape[1]
        rep = Hq // Hkv
        q = (lambda x, *d: x.permute(*d))((x @ wq).reshape(B, Sq, Hq, Dh), 0, 2, 1, 3)
        k = (lambda x, n, axis: torch.repeat_interleave(x, n, dim=axis))(k_cache, rep, axis=1)
        v = (lambda x, n, axis: torch.repeat_interleave(x, n, dim=axis))(v_cache, rep, axis=1)
        scores = torch.einsum("bhqd,bhkd->bhqk", q, k) * (Dh ** -0.5)
        p = _softmax(scores, axis=-1)
        o = torch.einsum("bhqk,bhkd->bhqd", p, v)
        return (lambda x, *d: x.permute(*d))(o, 0, 2, 1, 3).reshape(B, Sq, Hq * Dh) @ wo

    def _B_ref(x, k_cache, v_cache, wq, wo):
        B, Sq, D = x.shape
        Hq, Dh = 16, 256
        Hkv = k_cache.shape[1]
        rep = Hq // Hkv
        q = (lambda x, *d: x.permute(*d))((x @ wq).reshape(B, Sq, Hq, Dh), 0, 2, 1, 3)
        k = (lambda x, n, axis: torch.repeat_interleave(x, n, dim=axis))(k_cache, rep, axis=1)
        v = (lambda x, n, axis: torch.repeat_interleave(x, n, dim=axis))(v_cache, rep, axis=1)
        scores = torch.einsum("bhqd,bhkd->bhqk", q, k) * (Dh ** -0.5)
        p = _softmax(scores, axis=-1)
        o = torch.einsum("bhqk,bhkd->bhqd", p, v)
        return (lambda x, *d: x.permute(*d))(o, 0, 2, 1, 3).reshape(B, Sq, Hq * Dh) @ wo

    a = _A_ref(A_x, A_k_cache, A_v_cache, A_wq, A_wo)
    b = _B_ref(B_x, B_k_cache, B_v_cache, B_wq, B_wo)
    return torch.concatenate([a, b], axis=-1)
```

```python
import struct, sys

NAME = "concat_heads__gqa_block_cached__gqa_block_cached__near_ridge"

HEADER = open('cdna_kernels/%s.s.ref' % NAME).read().split('; Override launch')[0]

out = []
def E(s=""):
    out.append("    " + s if s and not s.endswith(":") else s)

def f32bits(x):
    return struct.unpack('<I', struct.pack('<f', x))[0]

SLOT = 32768
SPARE = 4 * SLOT

vLane = 0
vW = [8, 9, 10, 11]
vKd = list(range(12, 20))
vVd = [20, 21]
vKA = list(range(22, 30))
vVA = list(range(30, 34))
vQAb = list(range(34, 38))
vQAw = list(range(38, 42))
vOAb = list(range(42, 49))
vOAw = list(range(49, 56))
vM, vL, vAl, vNM, vT0, vT1 = 56, 57, 58, 59, 60, 61
vP = 80
vS = 96
vO = 128
aQ = 0
aF = 64
aX = 128

sW, sH, sB, sBlk = 3, 4, 6, 7
SX, SK, SV, SWQ, SWO, SWS = 8, 12, 16, 20, 24, 28
sWoff = 32
sKV = 33
sT = 34
sC = 35
sWQb = 58
sWOb = 59
sTmp = 60
sTmp2 = 61
sNext = 62
sKslot = 64
sQh = 65
sHh = 66

def srd(n):
    return "s[%d:%d]" % (n, n + 3)
def vr(a, n):
    return "v[%d:%d]" % (a, a + n - 1)
def ar(a, n):
    return "a[%d:%d]" % (a, a + n - 1)

def pipelined(items, nread, look, between=None):
    n = len(items)
    def reads(i):
        for s in items[i][0](aF + 4 * (i % 16)):
            E(s)
    for i in range(min(look, n)):
        reads(i)
    if between:
        between()
    for i in range(n):
        pend = (min(n, i + look) - (i + 1)) * nread
        E("s_waitcnt lgkmcnt(%d)" % pend)
        E(items[i][1](aF + 4 * (i % 16)))
        if i + look < n:
            reads(i + look)

def dma_w(srdreg, sbase, stride, tile, slot):
    for j in range(8):
        E("s_add_u32 m0, s%d, 0x%x" % (sWoff, slot * SLOT + j * 1024))
        E("s_add_u32 s%d, s%d, 0x%x" % (sTmp, sbase, (32 * tile + j) * stride))
        E("buffer_load_dwordx4 v%d, %s, s%d offen lds" % (vW[j & 3], srd(srdreg), sTmp))

def dma_kv_static(isK, t, slot):
    for half in range(2):
        E("s_add_u32 m0, s%d, 0x%x" % (sWoff, slot * SLOT + half * 4096))
        E("s_add_u32 s%d, s%d, 0x%x" % (sTmp, sKV, t * 32768 + half * 4096))
        for jj in range(4):
            j = half * 4 + jj
            vo = vKd[j] if isK else vVd[j & 1]
            E("buffer_load_dwordx4 v%d, %s, s%d offen offset:%d lds" % (vo, srd(SK if isK else SV), sTmp, jj * 1024))

def dma_tile_static(T):
    slot = T % 4
    if T < 14:
        dma_w(SWQ, sWQb, 8192, T, slot)
    elif T < 46:
        t = (T - 14) // 2
        dma_kv_static((T - 14) % 2 == 0, t, slot)
    elif T < 62:
        dma_w(SWO, sWOb, 896, T - 46, slot)

def gen_main():
    E("attn_kernel:")
    E("s_cmp_ge_u32 s2, 256")
    E("s_cbranch_scc1 L_attn_end")
    E("s_load_dwordx16 s[36:51], s[0:1], 0")
    E("s_load_dwordx4 s[52:55], s[0:1], 64")
    E("s_load_dwordx2 s[56:57], s[0:1], 96")
    E("v_lshrrev_b32 v1, 6, v0")
    E("v_and_b32 v0, 63, v0")
    E("v_readfirstlane_b32 s%d, v1" % sW)
    E("s_and_b32 s%d, s2, 7" % sH)
    E("s_lshr_b32 s5, s2, 3")
    E("s_and_b32 s%d, s5, 15" % sB)
    E("s_lshr_b32 s%d, s5, 4" % sBlk)
    E("s_waitcnt lgkmcnt(0)")
    E("s_cmp_eq_u32 s%d, 0" % sBlk)
    sizes = [917504, 67108864, 67108864, 3670016, 3670016]
    for k, sr in enumerate([SX, SK, SV, SWQ, SWO]):
        E("s_cselect_b32 s%d, s%d, s%d" % (sr, 36 + 2 * k, 46 + 2 * k))
        E("s_cselect_b32 s%d, s%d, s%d" % (sr + 1, 37 + 2 * k, 47 + 2 * k))
        E("s_mov_b32 s%d, 0x%x" % (sr + 2, sizes[k]))
        E("s_mov_b32 s%d, 0x20000" % (sr + 3))
    E("s_mov_b32 s%d, s56" % SWS)
    E("s_mov_b32 s%d, s57" % (SWS + 1))
    E("s_mov_b32 s%d, 0x%x" % (SWS + 2, 256 * 114688))
    E("s_mov_b32 s%d, 0x20000" % (SWS + 3))
    E("s_and_b32 s%d, s%d, 1" % (sQh, sW))
    E("s_lshr_b32 s%d, s%d, 1" % (sHh, sW))
    E("s_lshl_b32 s%d, s%d, 13" % (sWoff, sW))
    E("s_lshl_b32 s%d, s%d, 3" % (sTmp, sB))
    E("s_add_u32 s%d, s%d, s%d" % (sTmp, sTmp, sH))
    E("s_lshl_b32 s%d, s%d, 19" % (sTmp, sTmp))
    E("s_add_u32 s%d, s%d, s%d" % (sKV, sTmp, sWoff))
    E("s_lshl_b32 s%d, s%d, 16" % (sWQb, sW))
    E("s_lshl_b32 s%d, s%d, 10" % (sTmp, sH))
    E("s_add_u32 s%d, s%d, s%d" % (sWQb, sWQb, sTmp))
    E("s_lshl_b32 s%d, s%d, 6" % (sTmp, sH))
    E("s_add_u32 s%d, s%d, s%d" % (sTmp, sTmp, sW))
    E("s_mul_i32 s%d, s%d, %d" % (sWOb, sTmp, 8 * 896))
    E("s_mov_b32 s%d, 0x%x" % (sC, f32bits(1.4426950408889634 / 16.0)))

    E("v_lshrrev_b32 v1, 5, v0")
    E("v_and_b32 v2, 31, v0")
    E("v_and_b32 v3, 15, v0")
    E("v_bfe_u32 v4, v0, 4, 1")
    E("v_bfe_u32 v5, v0, 2, 2")
    E("v_and_b32 v6, 3, v0")
    E("s_lshl_b32 s%d, s%d, 6" % (sTmp, sB))
    E("s_lshl_b32 s%d, s%d, 5" % (sTmp2, sQh))
    E("s_add_u32 s%d, s%d, s%d" % (sTmp, sTmp, sTmp2))
    E("v_add_u32 v7, s%d, v2" % sTmp)
    E("v_mul_u32_u24 v7, 896, v7")
    E("v_lshl_add_u32 v7, v1, 4, v7")
    for s in range(28):
        E("buffer_load_dwordx4 %s, v7, %s, 0 offen offset:%d" % (ar(aX + 4 * s, 4), srd(SX), 32 * s))
    for j in range(4):
        E("v_xor_b32 v%d, %d, v0" % (vW[j], j << 2))
        E("v_lshlrev_b32 v%d, 4, v%d" % (vW[j], vW[j]))
    for T in range(3):
        dma_tile_static(T)
    E("v_xor_b32 v7, v2, v1")
    for j in range(8):
        E("v_xor_b32 v%d, %d, v7" % (vKd[j], 2 * j))
        E("v_lshlrev_b32 v%d, 4, v%d" % (vKd[j], vKd[j]))
        E("v_lshl_add_u32 v%d, v1, 9, v%d" % (vKd[j], vKd[j]))
    E("v_lshlrev_b32 v7, 2, v1")
    E("v_xor_b32 v7, v7, v2")
    for j in range(2):
        E("v_xor_b32 v%d, %d, v7" % (vVd[j], ((2 * j) & 3) << 2))
        E("v_lshlrev_b32 v%d, 4, v%d" % (vVd[j], vVd[j]))
        E("v_lshl_add_u32 v%d, v1, 9, v%d" % (vVd[j], vVd[j]))
    E("v_xor_b32 v7, v1, v3")
    E("v_lshlrev_b32 v7, 4, v7")
    for j in range(8):
        E("v_xor_b32 v%d, %d, v7" % (vKA[j], 32 * j))
        E("v_lshl_add_u32 v%d, v2, 9, v%d" % (vKA[j], vKA[j]))
        E("v_add_u32 v%d, 0x10000, v%d" % (vKA[j], vKA[j]))
    E("v_lshl_add_u32 v7, v1, 2, v5")
    E("v_lshlrev_b32 v7, 9, v7")
    E("v_lshl_add_u32 v7, v4, 5, v7")
    E("v_lshl_add_u32 v7, v6, 3, v7")
    E("v_add_u32 v7, 0x18000, v7")
    for j in range(4):
        E("v_xor_b32 v%d, %d, v5" % (vVA[j], j))
        E("v_lshl_add_u32 v%d, v%d, 6, v7" % (vVA[j], vVA[j]))
    E("v_lshl_add_u32 v7, v1, 3, v5")
    E("v_lshlrev_b32 v7, 10, v7")
    E("v_lshl_add_u32 v7, v4, 5, v7")
    E("s_lshl_b32 s%d, s%d, 9" % (sTmp, sHh))
    E("v_add_u32 v7, s%d, v7" % sTmp)
    E("v_and_b32 v62, 1, v6")
    E("v_lshrrev_b32 v63, 1, v6")
    E("v_lshl_add_u32 v62, v62, 1, v63")
    E("v_lshl_add_u32 v7, v62, 3, v7")
    for j in range(4):
        E("v_xor_b32 v%d, %d, v5" % (vQAb[j], j))
        E("v_lshl_add_u32 v%d, v%d, 6, v7" % (vQAb[j], vQAb[j]))
    E("v_lshl_add_u32 v7, v1, 2, v5")
    E("v_lshlrev_b32 v7, 10, v7")
    E("v_lshl_add_u32 v7, v4, 5, v7")
    E("v_lshl_add_u32 v7, v6, 3, v7")
    E("s_mul_i32 s%d, s%d, 7" % (sTmp2, sHh))
    for t in range(7):
        E("s_add_u32 s%d, s%d, %d" % (sTmp, sTmp2, t))
        E("s_and_b32 s67, s%d, 3" % sTmp)
        E("s_lshr_b32 s%d, s%d, 2" % (sTmp, sTmp))
        E("s_lshl_b32 s%d, s%d, 8" % (sTmp, sTmp))
        E("v_xor_b32 v%d, s67, v5" % vOAb[t])
        E("v_lshl_add_u32 v%d, v%d, 6, v7" % (vOAb[t], vOAb[t]))
        E("v_add_u32 v%d, s%d, v%d" % (vOAb[t], sTmp, vOAb[t]))

    for T in range(14):
        slot = T % 4
        for j in range(4):
            E("v_add_u32 v%d, 0x%x, v%d" % (vQAw[j], slot * SLOT, vQAb[j]))
        E("s_waitcnt vmcnt(16)")
        E("s_barrier")
        items = []
        for ks in range(2):
            for dt in range(8):
                off = (dt >> 2) * 256 + ks * 16384
                rd = (lambda f, dt=dt, off=off: [
                    "ds_read_b64_tr_b16 %s, v%d offset:%d" % (ar(f, 2), vQAw[dt & 3], off),
                    "ds_read_b64_tr_b16 %s, v%d offset:%d" % (ar(f + 2, 2), vQAw[dt & 3], off + 4096)])
                kk = 2 * T + ks
                first = (T == 0 and ks == 0)
                mf = (lambda f, dt=dt, kk=kk, first=first:
                      "v_mfma_f32_32x32x16_bf16 %s, %s, %s, %s" % (
                          vr(vO + 16 * dt, 16), ar(f, 4), ar(aX + 4 * kk, 4),
                          "0" if first else vr(vO + 16 * dt, 16)))
                items.append((rd, mf))
        pipelined(items, 2, 6, between=lambda T=T: dma_tile_static(T + 3))
    E("s_nop 15")
    for i in range(64):
        E("v_cvt_pk_bf16_f32 v%d, v%d, v%d" % (64 + (i & 15), vO + 2 * i, vO + 2 * i + 1))
        if (i & 15) == 15:
            for k in range(16):
                E("v_accvgpr_write_b32 a%d, v%d" % (aQ + i - 15 + k, 64 + k))
    for i in range(128):
        E("v_mov_b32 v%d, 0" % (vO + i))
    E("v_mov_b32 v%d, 0xff7fffff" % vM)
    E("v_mov_b32 v%d, 0" % vL)
    E("s_mov_b32 s%d, 0" % sT)
    E("s_add_u32 s%d, s%d, 0x8000" % (sNext, sKV))
    E("s_add_u32 s%d, s%d, 0x10000" % (sKslot, sWoff))

    E("L_loop:")
    E("s_waitcnt vmcnt(16)")
    E("s_barrier")
    items = []
    for ks in range(16):
        for mt in range(2):
            off = (ks >> 3) * 256 + mt * 16384
            rd = (lambda f, ks=ks, off=off: ["ds_read_b128 %s, v%d offset:%d" % (ar(f, 4), vKA[ks & 7], off)])
            mf = (lambda f, ks=ks, mt=mt: "v_mfma_f32_32x32x16_bf16 %s, %s, %s, %s" % (
                vr(vS + 16 * mt, 16), ar(f, 4), ar(aQ + 4 * ks, 4), "0" if ks == 0 else vr(vS + 16 * mt, 16)))
            items.append((rd, mf))
    def kdma():
        E("s_cmp_eq_u32 s%d, 15" % sT)
        E("s_cbranch_scc1 L_kdma_wo")
        E("s_xor_b32 s%d, s%d, 0x10000" % (sTmp2, sKslot))
        for half in range(2):
            E("s_add_u32 m0, s%d, 0x%x" % (sTmp2, 32768 + half * 4096))
            E("s_add_u32 s%d, s%d, 0x%x" % (sTmp, sNext, half * 4096))
            for jj in range(4):
                j = half * 4 + jj
                E("buffer_load_dwordx4 v%d, %s, s%d offen offset:%d lds" % (vVd[j & 1], srd(SV), sTmp, jj * 1024))
        E("s_branch L_kdma_done")
        E("L_kdma_wo:")
        dma_tile_static(47)
        E("L_kdma_done:")
    pipelined(items, 1, 8, between=kdma)
    E("s_nop 15")
    S = [vS + i for i in range(32)]
    E("v_max3_f32 v%d, v%d, v%d, v%d" % (vT0, S[0], S[1], S[2]))
    E("v_max3_f32 v%d, v%d, v%d, v%d" % (vT1, S[3], S[4], S[5]))
    for i in range(6, 30, 4):
        E("v_max3_f32 v%d, v%d, v%d, v%d" % (vT0, vT0, S[i], S[i + 1]))
        E("v_max3_f32 v%d, v%d, v%d, v%d" % (vT1, vT1, S[i + 2], S[i + 3]))
    E("v_max3_f32 v%d, v%d, v%d, v%d" % (vT0, vT0, S[30], S[31]))
    E("v_max_f32 v%d, v%d, v%d" % (vT0, vT0, vT1))
    E("v_mov_b32 v%d, v%d" % (vT1, vT0))
    E("s_nop 1")
    E("v_permlane32_swap_b32 v%d, v%d" % (vT0, vT1))
    E("v_max3_f32 v%d, v%d, v%d, v%d" % (vT0, vT0, vT1, vM))
    E("v_sub_f32 v%d, v%d, v%d" % (vAl, vM, vT0))
    E("v_mul_f32 v%d, s%d, v%d" % (vAl, sC, vAl))
    E("v_exp_f32 v%d, v%d" % (vAl, vAl))
    E("v_mov_b32 v%d, v%d" % (vM, vT0))
    E("v_mul_f32 v%d, s%d, v%d" % (vNM, sC, vT0))
    E("v_sub_f32 v%d, 0, v%d" % (vNM, vNM))
    for i in range(32):
        E("v_fma_f32 v%d, v%d, s%d, v%d" % (S[i], S[i], sC, vNM))
    for i in range(32):
        E("v_exp_f32 v%d, v%d" % (S[i], S[i]))
    E("v_mul_f32 v%d, v%d, v%d" % (vL, vL, vAl))
    for k in range(4):
        E("v_add_f32 v%d, v%d, v%d" % (64 + k, S[k], S[k + 4]))
    for i in range(8, 32, 4):
        for k in range(4):
            E("v_add_f32 v%d, v%d, v%d" % (64 + k, 64 + k, S[i + k]))
    E("v_add_f32 v64, v64, v65")
    E("v_add_f32 v66, v66, v67")
    E("v_add_f32 v64, v64, v66")
    E("v_add_f32 v%d, v%d, v64" % (vL, vL))
    for i in range(16):
        E("v_cvt_pk_bf16_f32 v%d, v%d, v%d" % (vP + i, S[2 * i], S[2 * i + 1]))
    for i in range(128):
        E("v_mul_f32 v%d, v%d, v%d" % (vO + i, vAl, vO + i))
    E("s_waitcnt vmcnt(16)")
    E("s_barrier")
    items = []
    for ks in range(4):
        for dt in range(8):
            off = (dt >> 2) * 256 + ks * 8192
            rd = (lambda f, dt=dt, off=off: [
                "ds_read_b64_tr_b16 %s, v%d offset:%d" % (ar(f, 2), vVA[dt & 3], off),
                "ds_read_b64_tr_b16 %s, v%d offset:%d" % (ar(f + 2, 2), vVA[dt & 3], off + 4096)])
            mf = (lambda f, dt=dt, ks=ks: "v_mfma_f32_32x32x16_bf16 %s, %s, %s, %s" % (
                vr(vO + 16 * dt, 16), ar(f, 4), vr(vP + 4 * ks, 4), vr(vO + 16 * dt, 16)))
            items.append((rd, mf))
    def vdma():
        E("s_cmp_eq_u32 s%d, 14" % sT)
        E("s_cbranch_scc1 L_vdma_wo0")
        E("s_cmp_eq_u32 s%d, 15" % sT)
        E("s_cbranch_scc1 L_vdma_wo2")
        for half in range(2):
            E("s_add_u32 m0, s%d, 0x%x" % (sKslot, half * 4096))
            E("s_add_u32 s%d, s%d, 0x%x" % (sTmp, sNext, 32768 + half * 4096))
            for jj in range(4):
                j = half * 4 + jj
                E("buffer_load_dwordx4 v%d, %s, s%d offen offset:%d lds" % (vKd[j], srd(SK), sTmp, jj * 1024))
        E("s_branch L_vdma_done")
        E("L_vdma_wo0:")
        dma_tile_static(46)
        E("s_branch L_vdma_done")
        E("L_vdma_wo2:")
        dma_tile_static(48)
        E("L_vdma_done:")
    pipelined(items, 2, 6, between=vdma)
    for j in range(8):
        E("v_xor_b32 v%d, 0x10000, v%d" % (vKA[j], vKA[j]))
    for j in range(4):
        E("v_xor_b32 v%d, 0x10000, v%d" % (vVA[j], vVA[j]))
    E("s_xor_b32 s%d, s%d, 0x10000" % (sKslot, sKslot))
    E("s_add_u32 s%d, s%d, 0x8000" % (sNext, sNext))
    E("s_add_u32 s%d, s%d, 1" % (sT, sT))
    E("s_cmp_lt_u32 s%d, 16" % sT)
    E("s_cbranch_scc1 L_loop")

    E("v_mov_b32 v%d, v%d" % (vT1, vL))
    E("s_nop 1")
    E("v_permlane32_swap_b32 v%d, v%d" % (vL, vT1))
    E("v_add_f32 v%d, v%d, v%d" % (vL, vL, vT1))
    E("v_rcp_f32 v%d, v%d" % (vL, vL))
    E("s_nop 7")
    for i in range(128):
        E("v_mul_f32 v%d, v%d, v%d" % (vO + i, vL, vO + i))
    for i in range(64):
        E("v_cvt_pk_bf16_f32 v%d, v%d, v%d" % (64 + i, vO + 2 * i, vO + 2 * i + 1))
    E("s_lshl_b32 s%d, s%d, 14" % (sTmp, sQh))
    E("s_cmp_eq_u32 s%d, 0" % sHh)
    E("s_mov_b32 s67, 0x%x" % SLOT)
    E("s_cselect_b32 s%d, 0x%x, s67" % (sTmp2, SPARE))
    E("s_add_u32 s%d, s%d, s%d" % (sTmp2, sTmp2, sTmp))
    E("v_lshlrev_b32 v1, 4, v0")
    E("v_add_u32 v2, s%d, v1" % sTmp2)
    E("v_add_u32 v3, s%d, v1" % sTmp)
    E("v_add_u32 v4, 0x%x, v3" % SPARE)
    E("v_add_u32 v3, 0x%x, v3" % SLOT)
    E("s_barrier")
    for f in range(16):
        E("ds_write_b128 v2, %s offset:%d" % (vr(64 + 4 * f, 4), f * 1024))
    E("s_waitcnt lgkmcnt(0)")
    E("s_barrier")
    for f in range(16):
        E("ds_read_b128 %s, v4 offset:%d" % (ar(aX + 4 * f, 4), f * 1024))
        if f % 8 == 7:
            E("s_waitcnt lgkmcnt(0)")
    for f in range(16):
        E("ds_read_b128 %s, v3 offset:%d" % (ar(aX + 64 + 4 * f, 4), f * 1024))
        if f % 8 == 7:
            E("s_waitcnt lgkmcnt(0)")

    for i in range(16):
        T = 46 + i
        slot = T % 4
        for t in range(7):
            E("v_add_u32 v%d, 0x%x, v%d" % (vOAw[t], slot * SLOT, vOAb[t]))
        E("s_waitcnt vmcnt(%d)" % (16 if T <= 59 else (8 if T == 60 else 0)))
        E("s_barrier")
        items = []
        for ks in range(2):
            for t in range(7):
                off = ks * 16384
                rd = (lambda f, t=t, off=off: [
                    "ds_read_b64_tr_b16 %s, v%d offset:%d" % (ar(f, 2), vOAw[t], off),
                    "ds_read_b64_tr_b16 %s, v%d offset:%d" % (ar(f + 2, 2), vOAw[t], off + 8192)])
                first = (i == 0 and ks == 0)
                bf = aX + 4 * (2 * i + ks)
                mf = (lambda f, t=t, bf=bf, first=first: "v_mfma_f32_32x32x16_bf16 %s, %s, %s, %s" % (
                    vr(vO + 16 * t, 16), ar(f, 4), ar(bf, 4), "0" if first else vr(vO + 16 * t, 16)))
                items.append((rd, mf))
        pipelined(items, 2, 6, between=lambda T=T: dma_tile_static(T + 3))
    E("s_mul_i32 s%d, s2, %d" % (sTmp, 114688))
    E("s_mul_i32 s%d, s%d, %d" % (sTmp2, sW, 28672))
    E("s_add_u32 s%d, s%d, s%d" % (sTmp, sTmp, sTmp2))
    E("v_lshlrev_b32 v1, 4, v0")
    E("s_nop 15")
    for tq in range(28):
        if tq % 4 == 0 and tq:
            E("s_add_u32 s%d, s%d, 0x1000" % (sTmp, sTmp))
        E("buffer_store_dwordx4 %s, v1, %s, s%d offen offset:%d" % (vr(vO + 4 * tq, 4), srd(SWS), sTmp, (tq % 4) * 1024))
    E("L_attn_end:")
    E("s_endpgm")

def gen_reduce():
    E(".p2align 8")
    E("reduce_kernel:")
    E("s_cmp_ge_u32 s2, 896")
    E("s_cbranch_scc1 L_red_end")
    E("s_load_dwordx2 s[4:5], s[0:1], 80")
    E("s_load_dwordx2 s[6:7], s[0:1], 96")
    E("s_mul_i32 s16, s2, 2341")
    E("s_lshr_b32 s16, s16, 16")
    E("s_mul_i32 s17, s16, 28")
    E("s_sub_u32 s17, s2, s17")
    E("s_mul_i32 s18, s17, 9363")
    E("s_lshr_b32 s18, s18, 16")
    E("s_mul_i32 s19, s18, 7")
    E("s_sub_u32 s19, s17, s19")
    E("s_waitcnt lgkmcnt(0)")
    E("s_mov_b32 s8, s4")
    E("s_mov_b32 s9, s5")
    E("s_mov_b32 s10, %d" % (16 * 64 * 896 * 2))
    E("s_mov_b32 s11, 0x20000")
    E("s_mov_b32 s12, s6")
    E("s_mov_b32 s13, s7")
    E("s_mov_b32 s14, 0x%x" % (256 * 114688))
    E("s_mov_b32 s15, 0x20000")
    E("s_mul_i32 s20, s16, %d" % (8 * 114688))
    E("s_lshl_b32 s21, s17, 12")
    E("s_add_u32 s20, s20, s21")
    E("v_lshlrev_b32 v1, 4, v0")
    for h in range(8):
        E("buffer_load_dwordx4 %s, v1, s[12:15], s20 offen" % vr(8 + 4 * h, 4))
        if h < 7:
            E("s_add_u32 s20, s20, %d" % 114688)
    E("v_and_b32 v2, 31, v0")
    E("v_bfe_u32 v3, v0, 5, 1")
    E("v_lshrrev_b32 v4, 6, v0")
    E("s_and_b32 s22, s16, 15")
    E("s_lshr_b32 s23, s16, 4")
    E("s_and_b32 s24, s18, 1")
    E("s_lshr_b32 s25, s18, 1")
    E("s_lshl_b32 s22, s22, 6")
    E("s_lshl_b32 s24, s24, 5")
    E("s_add_u32 s22, s22, s24")
    E("v_add_u32 v2, s22, v2")
    E("v_mul_u32_u24 v2, 896, v2")
    E("s_mul_i32 s23, s23, 448")
    E("s_mul_i32 s25, s25, 224")
    E("s_add_u32 s23, s23, s25")
    E("s_lshl_b32 s19, s19, 5")
    E("s_add_u32 s23, s23, s19")
    E("v_add_u32 v2, s23, v2")
    E("v_lshl_add_u32 v2, v4, 3, v2")
    E("v_lshl_add_u32 v2, v3, 2, v2")
    E("v_lshlrev_b32 v2, 1, v2")
    for h in range(1, 8):
        E("s_waitcnt vmcnt(%d)" % (7 - h))
        for k in range(4):
            E("v_add_f32 v%d, v%d, v%d" % (8 + k, 8 + k, 8 + 4 * h + k))
    E("v_cvt_pk_bf16_f32 v4, v8, v9")
    E("v_cvt_pk_bf16_f32 v5, v10, v11")
    E("buffer_store_dwordx2 v[4:5], v2, s[8:11], 0 offen")
    E("L_red_end:")
    E("s_endpgm")

def kd(name, vgpr, accum, sgpr=102):
    return """.amdhsa_kernel %s
  .amdhsa_next_free_vgpr %d
  .amdhsa_next_free_sgpr %d
  .amdhsa_accum_offset %d
  .amdhsa_group_segment_fixed_size 0
  .amdhsa_kernarg_size 104
  .amdhsa_user_sgpr_count 2
  .amdhsa_user_sgpr_kernarg_segment_ptr 1
  .amdhsa_system_sgpr_workgroup_id_x 1
.end_amdhsa_kernel
""" % (name, vgpr, sgpr, accum)

gen_main()
gen_reduce()

txt = HEADER
txt += "; @launch kernel=attn_kernel grid=(256,1,1) block=(256,1,1) lds=163840\n"
txt += "; @launch kernel=reduce_kernel grid=(896,1,1) block=(256,1,1) lds=0\n"
txt += '.amdgcn_target "amdgcn-amd-amdhsa--gfx950"\n.text\n.globl attn_kernel\n.globl reduce_kernel\n'
txt += ".type attn_kernel,@function\n.type reduce_kernel,@function\n.p2align 8\n"
txt += "\n".join(out) + "\n"
txt += '.section .rodata,"a"\n.p2align 6\n'
txt += kd("attn_kernel", 512, 256)
txt += ".p2align 6\n"
txt += kd("reduce_kernel", 40, 40, 32)
dst = sys.argv[1] if len(sys.argv) > 1 else 'cdna_kernels/%s.s' % NAME
open(dst, 'w').write(txt)
print("wrote", dst, len(out), "lines")
```
